```python
import torch

def _softmax(x, axis=-1):
    return torch.softmax(x, dim=axis)
def _gelu(x):
    return torch.nn.functional.gelu(x, approximate="tanh")
def _silu(x):
    return torch.nn.functional.silu(x)
def _sigmoid(x):
    return torch.sigmoid(x)
def _layernorm(x, axis=-1, eps=1e-5):
    m = x.mean(dim=axis, keepdim=True)
    v = x.var(dim=axis, keepdim=True, unbiased=False)
    return (x - m) / torch.sqrt(v + eps)
def _scatter_add(tgt, idx, src, axis=0):
    return tgt.clone().index_add_(axis, idx, src)
def _segment_sum(src, seg, n):
    out = torch.zeros((n,) + src.shape[1:], dtype=src.dtype)
    return out.index_add_(0, seg, src)
def _pad(x, pw):
    flat = tuple(v for pair in reversed(pw) for v in pair)
    return torch.nn.functional.pad(x, flat)

kernel_name = 'concat_heads__sliding_block_cached__sliding_block_cached__decode'

def setup_inputs():

    _w = (lambda a: (lambda t: t.to(torch.bfloat16) if t.is_floating_point() else t)(torch.as_tensor(a)))
    def _A_setup():
        B, Sq, D = 2, 1, 576
        Hq, Hkv, Sk, Dh = 32, 16, 16384, 128
        assert Hq % Hkv == 0, (Hq, Hkv)
        return {
            "x": _w((lambda *s: torch.randn(*s, dtype=torch.bfloat16) * 0.8)(B, Sq, D)),
            "k_cache": _w((lambda *s: torch.randn(*s, dtype=torch.bfloat16) * 0.8)(B, Hkv, Sk, Dh)),
            "v_cache": _w((lambda *s: torch.randn(*s, dtype=torch.bfloat16) * 0.05)(B, Hkv, Sk, Dh)),
            "wq": _w((lambda *s: torch.randn(*s, dtype=torch.bfloat16) * 0.8)(D, Hq * Dh) * (D ** -0.5)),
            "wo": _w((lambda *s: torch.randn(*s, dtype=torch.bfloat16) * 0.05)(Hq * Dh, D) * ((Hq * Dh) ** -0.5)),
        }
    _A_in = _A_setup()

    def _B_setup():
        B, Sq, D = 2, 1, 576
        Hq, Hkv, Sk, Dh = 32, 16, 16384, 128
        assert Hq % Hkv == 0, (Hq, Hkv)
        return {
            "x": _w((lambda *s: torch.randn(*s, dtype=torch.bfloat16) * 0.8)(B, Sq, D)),
            "k_cache": _w((lambda *s: torch.randn(*s, dtype=torch.bfloat16) * 0.8)(B, Hkv, Sk, Dh)),
            "v_cache": _w((lambda *s: torch.randn(*s, dtype=torch.bfloat16) * 0.05)(B, Hkv, Sk, Dh)),
            "wq": _w((lambda *s: torch.randn(*s, dtype=torch.bfloat16) * 0.8)(D, Hq * Dh) * (D ** -0.5)),
            "wo": _w((lambda *s: torch.randn(*s, dtype=torch.bfloat16) * 0.05)(Hq * Dh, D) * ((Hq * Dh) ** -0.5)),
        }
    _B_in = _B_setup()

    return {
        "A_x": _A_in["x"],
        "A_k_cache": _A_in["k_cache"],
        "A_v_cache": _A_in["v_cache"],
        "A_wq": _A_in["wq"],
        "A_wo": _A_in["wo"],
        "B_x": _B_in["x"],
        "B_k_cache": _B_in["k_cache"],
        "B_v_cache": _B_in["v_cache"],
        "B_wq": _B_in["wq"],
        "B_wo": _B_in["wo"],
    }

def reference(A_x, A_k_cache, A_v_cache, A_wq, A_wo, B_x, B_k_cache, B_v_cache, B_wq, B_wo):
    def _A_ref(x, k_cache, v_cache, wq, wo):
        B, Sq, D = x.shape
        Hq, Dh = 32, 128
        Hkv, Sk = k_cache.shape[1], k_cache.shape[2]
        W = min(4096, max(256, Sk // 4))
        rep = Hq // Hkv
        q = (lambda x, *d: x.permute(*d))((x @ wq).reshape(B, Sq, Hq, Dh), 0, 2, 1, 3)
        k = (lambda x, n, axis: torch.repeat_interleave(x, n, dim=axis))(k_cache[:, :, Sk - W:, :], rep, axis=1)
        v = (lambda x, n, axis: torch.repeat_interleave(x, n, dim=axis))(v_cache[:, :, Sk - W:, :], rep, axis=1)
        scores = torch.einsum("bhqd,bhkd->bhqk", q, k) * (Dh ** -0.5)
        p = _softmax(scores, axis=-1)
        o = torch.einsum("bhqk,bhkd->bhqd", p, v)
        return (lambda x, *d: x.permute(*d))(o, 0, 2, 1, 3).reshape(B, Sq, Hq * Dh) @ wo

    def _B_ref(x, k_cache, v_cache, wq, wo):
        B, Sq, D = x.shape
        Hq, Dh = 32, 128
        Hkv, Sk = k_cache.shape[1], k_cache.shape[2]
        W = min(4096, max(256, Sk // 4))
        rep = Hq // Hkv
        q = (lambda x, *d: x.permute(*d))((x @ wq).reshape(B, Sq, Hq, Dh), 0, 2, 1, 3)
        k = (lambda x, n, axis: torch.repeat_interleave(x, n, dim=axis))(k_cache[:, :, Sk - W:, :], rep, axis=1)
        v = (lambda x, n, axis: torch.repeat_interleave(x, n, dim=axis))(v_cache[:, :, Sk - W:, :], rep, axis=1)
        scores = torch.einsum("bhqd,bhkd->bhqk", q, k) * (Dh ** -0.5)
        p = _softmax(scores, axis=-1)
        o = torch.einsum("bhqk,bhkd->bhqd", p, v)
        return (lambda x, *d: x.permute(*d))(o, 0, 2, 1, 3).reshape(B, Sq, Hq * Dh) @ wo

    a = _A_ref(A_x, A_k_cache, A_v_cache, A_wq, A_wo)
    b = _B_ref(B_x, B_k_cache, B_v_cache, B_wq, B_wo)
    return torch.concatenate([a, b], axis=-1)
```

```python
import sys, math
NAME = "concat_heads__sliding_block_cached__sliding_block_cached__decode_kernel"
HDR = open("concat_heads__sliding_block_cached__sliding_block_cached__decode.s.ref").read().split("; Override")[0]
WS_Q, WS_R, WS_Y, WS_E, WS_C, WS_SZ = 0, 0x40000, 0xC0000, 0x110000, 0x111000, 0x120000
L_QP, L_QB, L_M, L_L, L_C, L_O, L_Y, L_SZ = 0, 4096, 4608, 4736, 4864, 5120, 9216, 11776
SPIN = 200000
class G:
    def __init__(s): s.L=[]; s.nv=0; s.lab=0
    def __call__(s, t): s.L.append(t)
    def vm(s, t): s.L.append(t); s.nv+=1; return s.nv-1
    def wait(s, idx):
        n = s.nv-idx-1
        assert 0 <= n
        s.L.append(f"s_waitcnt vmcnt({min(n,63)})")
    def label(s, p): s.lab+=1; return f"L_{p}{s.lab}"
def gen(D=8, stamps=False, role2=0, wopos=0, wolate=0, woflags=' nt', split=0, qpart=7, qgath=46, qchk=54, Dd=8, tpos=8, qn=0, rot=0, pn=8, tpos0=8, kvflags=" nt", wflags=" nt", sleep1=0, D0=None, quse=55, xmap=2, back=0, DV=None, DVs=96, pre=0):
    if D0 is None: D0 = D
    lag = min(D, 24)
    if DV is None: DV = D
    A = G()
    def stamp(k):
        if stamps: A(f"s_memrealtime s[{80+2*k}:{81+2*k}]\ns_waitcnt lgkmcnt(0)")
    A(HDR + f"; @launch grid=(256,1,1) block=(256,1,1) lds={L_SZ}")
    A('.amdgcn_target "amdgcn-amd-amdhsa--gfx950"\n.text')
    A(f".globl {NAME}\n.p2align 8\n.type {NAME},@function\n{NAME}:")
    A("s_cmp_ge_u32 s2, 256\ns_cbranch_scc1 L_end")
    stamp(0)
    A("s_and_b32 s3, s2, 7\ns_lshr_b32 s4, s2, 3\ns_and_b32 s5, s4, 3\ns_lshl_b32 s3, s3, 2\ns_add_u32 s3, s3, s5")
    A("s_lshr_b32 s4, s2, 5")
    if xmap == 1: A("s_lshr_b32 s3, s2, 3\ns_add_u32 s4, s2, s3\ns_and_b32 s4, s4, 7")
    if xmap == 4:
        A("s_lshr_b32 s5, s2, 1\ns_xor_b32 s6, s5, s2\ns_and_b32 s6, s6, 1\ns_lshr_b32 s4, s2, 4\ns_lshl_b32 s3, s4, 1\ns_add_u32 s3, s3, s6")
        A("s_add_u32 s5, s5, s4\ns_and_b32 s5, s5, 3\ns_bfe_u32 s6, s2, 0x10003")
        A("s_lshl_b32 s4, s6, 2\ns_add_u32 s4, s4, s5\ns_lshl_b32 s7, s5, 1\ns_add_u32 s7, s7, s6")
    elif xmap == 2:
        A("s_lshr_b32 s5, s2, 4\ns_and_b32 s3, s2, 4\ns_lshl_b32 s3, s3, 2\ns_add_u32 s3, s3, s5")
        A("s_add_u32 s5, s5, s2\ns_and_b32 s5, s5, 3\ns_bfe_u32 s6, s2, 0x10003")
        A("s_lshl_b32 s4, s6, 2\ns_add_u32 s4, s4, s5\ns_lshl_b32 s7, s5, 1\ns_add_u32 s7, s7, s6")
    else: A("s_mov_b32 s7, s4")
    A("s_lshr_b32 s5, s3, 4\ns_and_b32 s6, s3, 15")
    A("s_load_dwordx2 s[18:19], s[0:1], 80\ns_load_dwordx2 s[64:65], s[0:1], 96")
    A("s_mul_i32 s70, s5, 40\ns_add_u32 s0, s0, s70\ns_addc_u32 s1, s1, 0")
    A("s_load_dwordx4 s[8:11], s[0:1], 0\ns_load_dwordx4 s[12:15], s[0:1], 16\ns_load_dwordx2 s[16:17], s[0:1], 32")
    A("v_lshrrev_b32 v1, 6, v0\nv_and_b32 v0, 63, v0\nv_readfirstlane_b32 s20, v1")
    A("s_lshr_b32 s21, s4, 2\ns_and_b32 s22, s4, 3")
    A("v_and_b32 v1, 15, v0\nv_lshrrev_b32 v2, 4, v0")
    A("s_mul_i32 s70, s21, 288\ns_mul_i32 s71, s20, 72\ns_add_u32 s70, s70, s71")
    A("v_lshrrev_b32 v9, 3, v1\nv_lshl_add_u32 v9, v9, 2, v2")
    A("v_and_b32 v10, 7, v1\nv_lshlrev_b32 v10, 4, v10")
    A("v_lshl_add_u32 v5, v9, 16, v10")
    A("v_add_u32 v9, 64, v9\nv_lshl_add_u32 v6, v9, 13, v10")
    A("v_bfe_u32 v9, v1, 1, 1\nv_lshl_add_u32 v9, v9, 2, v2")
    A("v_and_b32 v10, 1, v1\nv_mul_u32_u24 v10, 1152, v10")
    A("s_lshl_b32 s71, s70, 1\nv_add_u32 v10, s71, v10")
    A("v_lshl_add_u32 v7, v9, 4, v10")
    A("v_lshl_add_u32 v8, v9, 1, v10\nv_add_u32 v8, 128, v8")
    A("v_lshlrev_b32 v3, 8, v1\nv_lshl_add_u32 v3, v2, 4, v3")
    A("v_lshlrev_b32 v4, 10, v2\nv_lshl_add_u32 v4, v1, 4, v4")
    A("s_lshl_b32 s72, s70, 13\ns_lshl_b32 s73, s6, 9\ns_add_u32 s72, s72, s73\ns_lshl_b32 s73, s22, 7\ns_add_u32 s72, s72, s73")
    A("s_lshl_b32 s73, s21, 4\ns_add_u32 s73, s73, s6\ns_lshl_b32 s73, s73, 22\ns_add_u32 s73, s73, 12288*256")
    A("s_lshl_b32 s74, s22, 2\ns_add_u32 s74, s74, s20\ns_lshl_b32 s74, s74, 12")
    A("s_waitcnt lgkmcnt(0)")
    A("s_mov_b32 s36, s8\ns_mov_b32 s37, s9\ns_mov_b32 s38, 2304\ns_mov_b32 s39, 0x20000")
    A(f"s_add_u32 s32, s14, s72\ns_addc_u32 s33, s15, 0\ns_sub_u32 s34, {576*8192}, s72\ns_mov_b32 s35, 0x20000")
    A(f"s_mov_b32 s40, s64\ns_mov_b32 s41, s65\ns_mov_b32 s42, {WS_SZ}\ns_mov_b32 s43, 0x20000\nv_mov_b32 v30, 0")
    A(f"s_lshl_b32 s57, s3, 1\ns_add_u32 s57, s57, s21\ns_lshl_b32 s57, s57, 8\ns_add_u32 s57, s57, {WS_C}")
    A("s_or_b32 s70, s20, s22\ns_cmp_lg_u32 s70, 0\ns_cbranch_scc1 L_noinit\ns_mov_b64 exec, 1")
    A("buffer_store_dword v30, v30, s[40:43], s57 offen sc1\ns_mov_b64 exec, -1\nL_noinit:")
    x1 = A.vm("buffer_load_dwordx4 v[196:199], v7, s[36:39], 0 offen")
    x2 = A.vm("buffer_load_ushort v200, v8, s[36:39], 0 offen")
    for t in range(8):
        A(f"s_mov_b32 s69, {t*8192}")
        A.vm(f"buffer_load_dwordx4 v[{128+4*t}:{131+4*t}], v5, s[32:35], s69 offen{wflags}")
    wq_last = A.vm(f"buffer_load_dwordx4 v[160:163], v6, s[32:35], 0 offen{wflags}")
    A(f"v_mov_b32 v31, 0\nds_write_b64 v30, v[30:31] offset:{L_C}\nv_mov_b32 v31, 1\ns_waitcnt lgkmcnt(0)\ns_barrier")
    A(f"s_add_u32 s24, s10, s73\ns_addc_u32 s25, s11, 0\ns_mov_b32 s26, {1<<20}\ns_mov_b32 s27, 0x20000")
    A(f"s_add_u32 s28, s12, s73\ns_addc_u32 s29, s13, 0\ns_mov_b32 s30, {1<<20}\ns_mov_b32 s31, 0x20000")
    assert rot % 2 == 0
    A(f"s_lshl_b32 s15, s3, 1\ns_add_u32 s15, s15, s21\ns_mul_i32 s15, s15, {rot*4096}\ns_add_u32 s74, s74, s15\ns_add_u32 s15, s15, 0x80000")
    for t in range(8): A(f"s_add_u32 s{48+t}, s74, {t*65536}\ns_and_b32 s{48+t}, s{48+t}, 0xfffff")
    A(f"s_lshl_b32 s75, s5, 8\ns_add_u32 s75, s75, {WS_E}\ns_add_u32 s76, s64, s75\ns_addc_u32 s77, s65, 0")
    A("s_load_dword s23, s[76:77], 0")
    A("s_mov_b32 s44, s18\ns_mov_b32 s45, s19\ns_mov_b32 s46, 4608\ns_mov_b32 s47, 0x20000")
    if pre:
        A("s_lshl_b32 s70, s6, 8\ns_lshl_b32 s71, s20, 6\ns_add_u32 s70, s70, s71\ns_mul_i32 s70, s70, 1152\ns_mul_i32 s71, s7, 144\ns_add_u32 s70, s70, s71\nv_mov_b32 v29, s70")
        A("s_mov_b64 exec, 1")
        if pre & 1: A.vm("buffer_load_dword v28, v30, s[28:31], s48 offen nt")
        if pre & 2: A.vm("global_load_dword v28, v29, s[16:17] nt")
        if pre & 4: A.vm("buffer_load_dword v28, v30, s[40:43], 0 offen sc1")
        if pre & 8: A.vm("buffer_load_dword v28, v30, s[44:47], 0 offen sc1")
        A("s_mov_b64 exec, -1")
    A("s_mov_b32 s66, 0x05040100\ns_mov_b32 s67, 0x07060302")
    c = 128**-0.5 * math.log2(math.e)
    import struct
    A(f"s_mov_b32 s68, 0x{struct.unpack('<I', struct.pack('<f', c))[0]:08x}")

    def transpose_mfma(raw, Aop, acc, first, outs=None):
        pend = None
        for mi in range(4):
            T = (48 + (mi & 1)*8) if outs is None else outs + mi*8
            for h in range(2):
                for p in range(4):
                    A(f"v_perm_b32 v{T+h*4+p}, v{raw+8*p+4+mi}, v{raw+8*p+mi}, s{66+h}")
            if outs is None:
                if pend: pend()
                def mk(mi=mi, T=T):
                    for h in range(2):
                        e = 2*mi+h; d = f"v[{acc+4*e}:{acc+4*e+3}]"
                        A(f"v_mfma_f32_16x16x32_bf16 {d}, {Aop}, v[{T+4*h}:{T+4*h+3}], {'0' if first else d}")
                pend = mk
        if outs is None:
            A("s_nop 1"); pend()

    st = {}
    def blk_qpart():
        A.wait(wq_last)
        stamp(1)
        A("v_mov_b32 v201, 0\nv_lshlrev_b32 v202, 16, v200\nv_mov_b32 v203, 0\nv_mov_b32 v204, 0\nv_mov_b32 v205, v200\nv_mov_b32 v206, 0\nv_lshlrev_b32 v207, 16, v200")
        transpose_mfma(128, "v[196:199]", 164, True)
        A("s_nop 7")
        for e in range(8):
            d = f"v[{164+4*e}:{167+4*e}]"
            A(f"v_mfma_f32_16x16x16_bf16 {d}, v[{200+2*(e&3)}:{201+2*(e&3)}], v[{160+2*(e>>2)}:{161+2*(e>>2)}], {d}")
        A("v_cmp_le_u32 vcc, 8, v1")
        A("v_lshrrev_b32 v9, 3, v1\ns_lshl_b32 s70, s20, 1\nv_add_u32 v9, s70, v9\nv_lshlrev_b32 v9, 9, v9\nv_and_b32 v10, 7, v1\nv_lshl_add_u32 v9, v10, 5, v9")
        A("s_nop 7")
        for b in range(2):
            for e in range(8):
                A(f"v_cndmask_b32 v{128+b*8+e}, v{164+4*e+b}, v{164+4*e+2+b}, vcc")
        A("s_mov_b64 exec, 0xffff")
        for b in range(2):
            for hh in range(2):
                A(f"ds_write_b128 v9, v[{128+b*8+hh*4}:{131+b*8+hh*4}] offset:{L_QP+b*256+hh*16}")
        A("s_mov_b64 exec, -1")
        A(f"s_waitcnt lgkmcnt(0)\ns_mov_b64 exec, 1\nds_add_rtn_u32 v9, v30, v31 offset:{L_C}\ns_mov_b64 exec, -1")
        A("s_add_u32 s23, s23, 1\nv_lshlrev_b32 v10, 2, v0\nv_lshlrev_b32 v11, 4, v0\nv_mov_b32 v13, s23\nv_mov_b32 v15, s23")
        A(f"s_lshl_b32 s70, s3, 13\ns_lshl_b32 s71, s22, 10\ns_add_u32 s70, s70, s71\ns_lshl_b32 s71, s21, 3\ns_add_u32 s70, s70, s71\ns_add_u32 s70, s70, {WS_Q}\ns_add_u32 s71, s70, 4096")
        sk = A.label("qskip")
        A(f"s_waitcnt lgkmcnt(0)\nv_readfirstlane_b32 s72, v9\ns_cmp_lg_u32 s72, 3\ns_cbranch_scc1 {sk}")
        for p in range(8):
            A(f"ds_read2st64_b32 v[{128+2*p}:{129+2*p}], v10 offset0:{2*p} offset1:{2*p+1}")
        A("s_waitcnt lgkmcnt(0)")
        for i in range(8): A(f"v_add_f32 v{128+i}, v{128+i}, v{136+i}")
        for i in range(4): A(f"v_add_f32 v{128+i}, v{128+i}, v{132+i}")
        A("v_add_f32 v12, v128, v130\nv_add_f32 v14, v129, v131")
        A("buffer_store_dwordx2 v[12:13], v11, s[40:43], s70 offen sc1\nbuffer_store_dwordx2 v[14:15], v11, s[40:43], s71 offen sc1")
        A(f"{sk}:")
    def q_load():
        return "buffer_load_dwordx4 v[16:19], v11, s[40:43], s78 offen sc1"
    def blk_qgath():
        A(f"s_lshl_b32 s78, s3, 1\ns_add_u32 s78, s78, s21\ns_lshl_b32 s78, s78, 12\ns_lshl_b32 s70, s20, 10\ns_add_u32 s78, s78, s70\ns_add_u32 s78, s78, {WS_Q}")
        st['qg'] = A.vm(q_load())
    def blk_qchk():
        A.wait(st['qg'])
        lc, lo = A.label("qchk"), A.label("qok")
        A(f"s_mov_b32 s79, {SPIN}")
        A(f"{lc}:\nv_cmp_ne_u32 vcc, s23, v17\nv_cmp_ne_u32 s[70:71], s23, v19\ns_or_b64 vcc, vcc, s[70:71]\ns_cbranch_vccz {lo}")
        A(f"s_sub_u32 s79, s79, 1\ns_cbranch_scc1 {lo}\n{q_load()}\ns_waitcnt vmcnt(0)\ns_branch {lc}\n{lo}:")
        stamp(3)
        A("v_add_f32 v16, v16, v18\ns_lshl_b32 s70, s20, 7\nv_lshl_add_u32 v15, v0, 1, s70\nv_cvt_pk_bf16_f32 v16, v16, v16")
        A(f"ds_write_b16 v15, v16 offset:{L_QB}")
        A(f"s_waitcnt lgkmcnt(0)\ns_mov_b64 exec, 1\nds_add_u32 v30, v31 offset:{L_C+4}\ns_mov_b64 exec, -1")
    def blk_quse():
        A("v_and_b32 v15, 1, v1\nv_lshlrev_b32 v15, 8, v15\nv_lshl_add_u32 v15, v2, 4, v15")
        lc = A.label("quse")
        A(f"{lc}:\nds_read_b32 v9, v30 offset:{L_C+4}\ns_waitcnt lgkmcnt(0)\nv_readfirstlane_b32 s72, v9\ns_cmp_lg_u32 s72, 4\ns_cbranch_scc1 {lc}")
        for cc in range(4): A(f"ds_read_b128 v[{32+4*cc}:{35+4*cc}], v15 offset:{L_QB+cc*64}")
        A("s_waitcnt lgkmcnt(0)")
    def blk_qk(t):
        A.wait(st['K'][4*t+3])
        d = f"v[{64+4*t}:{67+4*t}]"
        for cc in range(4):
            A(f"v_mfma_f32_16x16x32_bf16 {d}, a[{16*t+4*cc}:{16*t+4*cc+3}], v[{32+4*cc}:{35+4*cc}], {'0' if cc == 0 else d}")
    def xmax():
        A("v_mov_b32 v10, v9\ns_nop 1\nv_permlane32_swap_b32 v9, v10\ns_nop 1\nv_max_f32 v9, v9, v10")
        A("v_mov_b32 v10, v9\ns_nop 1\nv_permlane16_swap_b32 v9, v10\ns_nop 1")
    def blk_max():
        A("s_nop 7")
        A("v_max3_f32 v9, v64, v65, v66\nv_max3_f32 v10, v67, v68, v69")
        r = 70
        while r < 94:
            A(f"v_max3_f32 v9, v9, v{r}, v{r+1}\nv_max3_f32 v10, v10, v{r+2}, v{r+3}"); r += 4
        A("v_max3_f32 v9, v9, v94, v95\nv_max_f32 v9, v9, v10")
        xmax()
        A("v_max_f32 v20, v9, v10\nv_mov_b32 v23, 0\nv_mov_b32 v24, 0\nv_mul_f32 v22, s68, v20")
        stamp(4)
    def ticket():
        A("v_mov_b32 v12, 1\ns_mov_b64 exec, 1")
        A.vm("buffer_atomic_add v12, v30, s[40:43], s57 offen sc0 sc1")
        A("s_mov_b64 exec, -1")
    def d_qk(p):
        for t in range(2):
            d = f"v[{80+4*t}:{83+4*t}]"
            for cc in range(4):
                a = 128 + 32*p + 16*t + 4*cc
                A(f"v_mfma_f32_16x16x32_bf16 {d}, a[{a}:{a+3}], v[{32+4*cc}:{35+4*cc}], {'0' if cc == 0 else d}")
    def d_max():
        A("s_nop 7\nv_max3_f32 v9, v80, v81, v82\nv_max3_f32 v10, v83, v84, v85\nv_max3_f32 v9, v9, v86, v87\nv_max_f32 v9, v9, v10")
        xmax()
        A("v_max3_f32 v20, v9, v10, v20\nv_mov_b32 v9, v22\nv_mul_f32 v22, s68, v20\nv_sub_f32 v9, v9, v22\nv_exp_f32 v9, v9")
        for t in range(8): A(f"v_fma_f32 v{80+t}, v{80+t}, s68, -v22")
    def d_exp():
        for t in range(8): A(f"v_exp_f32 v{80+t}, v{80+t}")
        A("v_mov_b32_dpp v10, v9 quad_perm:[0,0,0,0] row_mask:0xf bank_mask:0xf\nv_mov_b32_dpp v13, v9 quad_perm:[1,1,1,1] row_mask:0xf bank_mask:0xf")
        A("v_fma_f32 v23, v23, v9, v80\nv_fma_f32 v24, v24, v9, v81")
        for t in range(2, 8): A(f"v_add_f32 v{23+(t&1)}, v{23+(t&1)}, v{80+t}")
        for p in range(4): A(f"v_cvt_pk_bf16_f32 v{76+p}, v{80+2*p}, v{80+2*p+1}")
        for e in range(8): A(f"v_mul_f32 v{96+4*e}, v{96+4*e}, v10\nv_mul_f32 v{97+4*e}, v{97+4*e}, v13")
    def d_pv(p):
        transpose_mfma(192 + 32*p, "v[76:79]", 96, False)
    def blk_exp(u):
        for t in range(8): A(f"v_fma_f32 v{64+8*u+t}, v{64+8*u+t}, s68, -v22")
        for t in range(8): A(f"v_exp_f32 v{64+8*u+t}, v{64+8*u+t}")
        for t in range(8): A(f"v_add_f32 v{23+(t&1)}, v{23+(t&1)}, v{64+8*u+t}")
        for p in range(4): A(f"v_cvt_pk_bf16_f32 v{64+4*u+p}, v{64+8*u+2*p}, v{64+8*u+2*p+1}")
    def blk_pv(u):
        A.wait(st['V'][8*u+7])
        transpose_mfma(128 + (u & 3)*32, f"v[{64+4*u}:{67+4*u}]", 96, u == 0)

    after = {}
    def at(slot, f): after.setdefault(slot, []).append(f)
    at(qpart, blk_qpart); at(qgath, blk_qgath); at(qchk, blk_qchk); at(quse, blk_quse)
    assert quse <= 63 - tpos0 and qchk <= quse and tpos0 <= 8 and pn >= qn + 2
    at(63 - tpos0, ticket)
    seq = [[lambda t=t: blk_qk(t) for t in range(4)], [lambda t=t: blk_qk(t) for t in range(4, 8)], [blk_max],
           [lambda: blk_exp(0), lambda: blk_exp(1)], [lambda: blk_exp(2), lambda: blk_exp(3)], [lambda: blk_pv(0)], [lambda: blk_pv(1)]]
    for i, fs in enumerate(seq):
        for f in fs: at(min(quse + 1 + i, 63), f)
    at(63, lambda: blk_pv(2))
    st['K'] = []; st['V'] = []
    for n in range(64):
        if n >= D0: A(f"s_waitcnt vmcnt({D-1})")
        if n < 32:
            t, cc = n >> 2, n & 3
            st['K'].append(A.vm(f"buffer_load_dwordx4 a[{4*n}:{4*n+3}], v3, s[24:27], s{48+t} offen offset:{cc*64}{kvflags}"))
        else:
            k = n - 32; u, tt = k >> 3, k & 7; r = 128 + (u & 3)*32 + tt*4
            st['V'].append(A.vm(f"buffer_load_dwordx4 v[{r}:{r+3}], v4, s[28:31], s{48+2*u+(tt>>2)} offen offset:{(tt&3)*256}{kvflags}"))
        for f in after.get(n, []): f()
    A(f"s_mov_b32 s56, 0\ns_waitcnt vmcnt({tpos0})")
    A("L_dyn:")
    for p in range(2):
        A(f"s_waitcnt vmcnt({tpos})\nv_readfirstlane_b32 s70, v12\ns_cmp_ge_u32 s70, 64\ns_cbranch_scc1 L_dexit")
        A("s_lshl_b32 s70, s70, 13\ns_add_u32 s48, s70, s15\ns_and_b32 s48, s48, 0xfffff\ns_add_u32 s49, s48, 0x1000")
        for n in range(16):
            A(f"s_waitcnt vmcnt({Dd-1})")
            if n < 8:
                a = 128 + 32*p + 4*n
                A(f"buffer_load_dwordx4 a[{a}:{a+3}], v3, s[24:27], s{48+(n>>2)} offen offset:{(n&3)*64}{kvflags}")
            else:
                r = 192 + 32*p + 4*(n-8)
                A(f"buffer_load_dwordx4 v[{r}:{r+3}], v4, s[28:31], s{48+((n-8)>>2)} offen offset:{(n&3)*256}{kvflags}")
            if n == 15 - tpos: ticket()
            if qn <= n < qn + 3:
                if p == 0: A(f"s_cmp_eq_u32 s56, 0\ns_cbranch_scc1 L_sk{n}")
                if n == qn:
                    A(f"s_waitcnt vmcnt({9 + qn + (1 if 15 - tpos <= qn else 0)})"); d_qk(p ^ 1)
                if n == qn + 1: d_max()
                if n == qn + 2: d_exp()
                if p == 0: A(f"L_sk{n}:")
            if n == pn:
                A(f"s_waitcnt vmcnt({1 + pn + (1 if 15 - tpos <= pn else 0)})"); d_pv(p ^ 1)
        A("s_add_u32 s56, s56, 1")
    A("s_branch L_dyn\nL_dexit:")
    if stamps: A("s_mul_i32 s70, s56, 100\ns_add_u32 s84, s80, s70\ns_addc_u32 s85, s81, 0")
    A(f"s_lshl_b32 s75, s3, 3\ns_add_u32 s78, s75, s4\ns_lshl_b32 s78, s78, 11\ns_add_u32 s78, s78, {WS_R}")
    if role2:
        assert xmap in (1, 3, 4)
        A("s_and_b32 s6, s2, 7\ns_lshl_b32 s6, s6, 1\ns_bfe_u32 s4, s2, 0x10003\ns_add_u32 s6, s6, s4")
        A("s_bfe_u32 s4, s2, 0x30004\ns_mov_b32 s7, s4\ns_lshl_b32 s3, s5, 4\ns_add_u32 s3, s3, s6")
    A("s_lshl_b32 s70, s6, 8\ns_lshl_b32 s71, s20, 6\ns_add_u32 s70, s70, s71\ns_mul_i32 s70, s70, 1152\ns_mul_i32 s71, s7, 144\ns_add_u32 s70, s70, s71")
    A(f"s_add_u32 s32, s16, s70\ns_addc_u32 s33, s17, 0\ns_sub_u32 s34, {4096*1152}, s70\ns_mov_b32 s35, 0x20000")
    A("v_mul_u32_u24 v5, 9216, v2\nv_lshl_add_u32 v5, v1, 4, v5")
    wo = {}
    def wo_loads(k0, k1):
        A("s_mov_b32 s72, 0x01ff01ff\ns_mov_b32 s73, s72\ns_mov_b64 exec, s[72:73]")
        for k in range(k0, k1):
            ks, t = k >> 3, k & 7
            A(f"s_mov_b32 s69, {(ks*32+t)*1152}")
            wo['l'] = A.vm(f"buffer_load_dwordx4 v[{128+ks*32+4*t}:{131+ks*32+4*t}], v5, s[32:35], s69 offen{woflags}")
        A("s_mov_b64 exec, -1")
    early = 16 - wopos
    if early: wo_loads(0, early)
    A(f"s_cmp_eq_u32 s56, 0\ns_cbranch_scc1 L_xsm\ns_waitcnt vmcnt({8+early})\ns_bitcmp1_b32 s56, 0\ns_cbranch_scc1 L_xq0")
    d_qk(1); A("s_branch L_xq1\nL_xq0:"); d_qk(0); A("L_xq1:"); d_max(); d_exp(); A("L_xsm:")
    A("v_and_b32 v9, 1, v1\nv_lshlrev_b32 v9, 6, v9\ns_lshl_b32 s70, s20, 4\nv_lshl_add_u32 v21, v2, 2, v9\nv_add_u32 v21, s70, v21")
    A("v_add_f32 v23, v23, v24")
    A(f"ds_write_b32 v21, v23 offset:{L_L}\nds_write_b32 v21, v20 offset:{L_M}")
    A("s_lshl_b32 s70, s20, 10\nv_lshlrev_b32 v6, 9, v2\nv_lshl_add_u32 v6, v1, 5, v6\nv_add_u32 v6, s70, v6")
    A("s_lshl_b32 s70, s20, 8\nv_lshl_add_u32 v7, v0, 3, s70")
    A("s_lshr_b32 s71, s20, 1\ns_lshl_b32 s72, s71, 6\nv_mov_b32 v8, s72")
    A("s_lshl_b32 s72, s20, 3\ns_add_u32 s72, s72, 1024\nv_mov_b32 v9, s72\nv_cmp_eq_u32 s[76:77], 32, v0\ns_nop 1\nv_cndmask_b32 v25, v7, v9, s[76:77]")
    A("s_lshl_b32 s75, s3, 3")
    A(f"s_lshl_b32 s75, s75, 11\ns_add_u32 s75, s75, {WS_R}")
    A("v_and_b32 v9, 7, v1\nv_lshlrev_b32 v9, 11, v9\nv_lshl_add_u32 v26, v2, 5, v9\nv_add_u32 v26, s70, v26")
    A("v_and_b32 v9, 1, v2\nv_lshlrev_b32 v9, 2, v9\nv_and_b32 v10, 3, v1\nv_add_u32 v9, v9, v10\ns_lshl_b32 s72, s71, 4\ns_add_u32 s72, s72, 1024\nv_lshl_add_u32 v27, v9, 11, s72")
    A("v_and_b32 v9, 1, v2\nv_cmp_ne_u32 s[62:63], 0, v9")
    A(f"s_waitcnt vmcnt({early})")
    if wopos and wolate == 0: wo_loads(early, 16)
    A("s_bitcmp1_b32 s56, 0\ns_cbranch_scc1 L_xp0")
    d_pv(1); A("s_branch L_xp1\nL_xp0:"); d_pv(0); A("L_xp1:")
    stamp(5)
    A("s_nop 7")
    for e in range(8): A(f"v_cndmask_b32 v{48+e}, v{96+4*e}, v{97+4*e}, s[62:63]")
    A("s_mov_b32 exec_hi, 0")
    A(f"ds_write_b128 v6, v[48:51] offset:{L_O}\nds_write_b128 v6, v[52:55] offset:{L_O+16}")
    A("s_mov_b64 exec, -1")
    if wopos and wolate == 1: wo_loads(early, 16)
    A("s_waitcnt lgkmcnt(0)\ns_barrier")
    for i in range(4): A(f"ds_read_b128 v[{80+4*i}:{83+4*i}], v8 offset:{L_M+16*i}")
    for wv in range(4): A(f"ds_read_b64 v[{48+2*wv}:{49+2*wv}], v7 offset:{L_O+wv*1024}")
    for i in range(4): A(f"ds_read_b128 v[{64+4*i}:{67+4*i}], v8 offset:{L_L+16*i}")
    A("s_waitcnt lgkmcnt(8)")
    for wv in range(4): A(f"v_max3_f32 v{80+4*wv}, v{80+4*wv}, v{81+4*wv}, v{82+4*wv}")
    for wv in range(4): A(f"v_max_f32 v{80+4*wv}, v{80+4*wv}, v{83+4*wv}")
    A("v_max3_f32 v81, v80, v84, v88\nv_max_f32 v81, v81, v92\nv_mul_f32 v81, s68, v81")
    for wv in range(4): A(f"v_fma_f32 v{80+4*wv}, v{80+4*wv}, s68, -v81")
    for wv in range(4): A(f"v_exp_f32 v{80+4*wv}, v{80+4*wv}")
    A("s_waitcnt lgkmcnt(4)")
    A("v_mul_f32 v48, v48, v80\nv_mul_f32 v49, v49, v80")
    for wv in range(1, 4): A(f"v_fmac_f32 v48, v{48+2*wv}, v{80+4*wv}\nv_fmac_f32 v49, v{49+2*wv}, v{80+4*wv}")
    A("v_cvt_pk_bf16_f32 v48, v48, v49\nv_mov_b32 v49, s23")
    A("s_waitcnt lgkmcnt(0)")
    for wv in range(4): A(f"v_add_f32 v{64+4*wv}, v{64+4*wv}, v{65+4*wv}\nv_add_f32 v{66+4*wv}, v{66+4*wv}, v{67+4*wv}")
    for wv in range(4): A(f"v_add_f32 v{64+4*wv}, v{64+4*wv}, v{66+4*wv}")
    A("v_mul_f32 v64, v64, v80\nv_fmac_f32 v64, v68, v84\nv_fmac_f32 v64, v72, v88\nv_fmac_f32 v64, v76, v92\nv_mov_b32 v66, v81")
    A("s_and_b32 s72, s20, 1\ns_cmp_lg_u32 s72, 0\ns_cselect_b64 s[72:73], -1, 0")
    A("v_cndmask_b32 v64, v66, v64, s[72:73]\nv_cndmask_b32 v48, v48, v64, s[76:77]")
    A("s_mov_b32 s72, -1\ns_mov_b32 s73, 1\ns_mov_b64 exec, s[72:73]")
    A.vm("buffer_store_dwordx2 v[48:49], v25, s[40:43], s78 offen sc1")
    A("s_mov_b64 exec, -1")
    stamp(6)
    if wopos and wolate == 2: wo_loads(early, 16)
    A("s_mov_b32 s60, 0x00ff00ff\ns_mov_b32 s61, s60")
    def gath1(cnt):
        f = A.vm if cnt else A
        A("s_mov_b64 exec, s[60:61]")
        for ks in range(2):
            for hh in range(2):
                f(f"buffer_load_dwordx4 v[{64+ks*8+hh*4}:{67+ks*8+hh*4}], v26, s[40:43], s75 offen offset:{ks*128+hh*16} sc1")
        A("s_mov_b64 exec, -1")
        f("buffer_load_dwordx4 v[80:83], v27, s[40:43], s75 offen sc1")
    if sleep1: A(f"s_sleep {sleep1}")
    gath1(True)
    A.wait(wo['l'] - (8 if split else 0))
    transpose_mfma(128, None, None, None, outs=192)
    if split: A.wait(wo['l'])
    transpose_mfma(160, None, None, None, outs=224)
    A("s_mul_i32 s70, s20, 576\nv_mul_u32_u24 v6, 288, v2\nv_lshl_add_u32 v6, v1, 5, v6\nv_add_u32 v6, s70, v6")
    A("s_mul_i32 s70, s20, 36\nv_add_u32 v7, s70, v0\nv_lshlrev_b32 v8, 3, v7\nv_lshlrev_b32 v7, 2, v7")
    A(f"s_lshl_b32 s70, s5, 3\ns_add_u32 s70, s70, s7\ns_mul_i32 s59, s70, {16*1152}\ns_add_u32 s59, s59, {WS_Y}\ns_mul_i32 s58, s6, 1152\ns_add_u32 s58, s58, s59")
    A("s_lshl_b32 s70, s20, 2\ns_mul_i32 s71, s6, 9\ns_add_u32 s70, s70, s71\nv_add_u32 v28, s70, v2")
    A("v_mul_u32_u24 v29, 1152, v1\nv_lshl_add_u32 v29, v28, 3, v29")
    A("v_cmp_le_u32 vcc, 72, v28\ns_mul_i32 s70, s5, 576\ns_mul_i32 s71, s7, 72\ns_add_u32 s70, s70, s71\nv_mov_b32 v9, 1080\nv_cndmask_b32 v9, 0, v9, vcc")
    A("v_add3_u32 v28, v28, v9, s70\nv_lshlrev_b32 v28, 1, v28")
    lc, lo = A.label("g1chk"), A.label("g1ok")
    A(f"s_mov_b32 s79, {SPIN}")
    A(f"{lc}:\ns_waitcnt vmcnt(0)")
    A("v_min3_u32 v9, v65, v67, v69\nv_max3_u32 v10, v65, v67, v69\nv_min3_u32 v9, v9, v71, v73\nv_max3_u32 v10, v10, v71, v73")
    A("v_min3_u32 v9, v9, v75, v77\nv_max3_u32 v10, v10, v75, v77\nv_min_u32 v9, v9, v79\nv_max_u32 v10, v10, v79")
    A("v_cmp_ne_u32 vcc, s23, v9\nv_cmp_ne_u32 s[70:71], s23, v10\nv_cmp_ne_u32 s[72:73], s23, v81\nv_cmp_ne_u32 s[76:77], s23, v83")
    A("s_or_b64 vcc, vcc, s[70:71]\ns_and_b64 vcc, vcc, s[60:61]\ns_or_b64 vcc, vcc, s[72:73]\ns_or_b64 vcc, vcc, s[76:77]")
    A(f"s_cbranch_vccz {lo}\ns_sub_u32 s79, s79, 1\ns_cbranch_scc1 {lo}")
    if back == 1:
        A("s_sleep 8")
    if back == 2:
        l2 = A.label("g1ml")
        A(f"{l2}:\ns_sleep 4\nbuffer_load_dwordx4 v[80:83], v27, s[40:43], s75 offen sc1\ns_waitcnt vmcnt(0)")
        A(f"v_cmp_ne_u32 vcc, s23, v81\nv_cmp_ne_u32 s[76:77], s23, v83\ns_or_b64 vcc, vcc, s[76:77]\ns_sub_u32 s79, s79, 1\ns_cbranch_scc1 {lo}\ns_cbranch_vccnz {l2}")
    gath1(False)
    A(f"s_branch {lc}\n{lo}:")
    stamp(7)
    A("v_mov_b32 v65, v66\nv_mov_b32 v66, v68\nv_mov_b32 v67, v70\nv_mov_b32 v73, v74\nv_mov_b32 v74, v76\nv_mov_b32 v75, v78")
    A("v_max_f32_dpp v84, v80, v80 quad_perm:[1,0,3,2] row_mask:0xf bank_mask:0xf\ns_nop 1")
    for e in range(8):
        A(f"v_mfma_f32_16x16x32_bf16 v[{96+4*e}:{99+4*e}], v[64:67], v[{192+4*e}:{195+4*e}], 0")
        if e == 0: A("v_max_f32_dpp v84, v84, v84 quad_perm:[2,3,0,1] row_mask:0xf bank_mask:0xf")
        if e == 1: A("v_sub_f32 v85, v80, v84")
        if e == 2: A("v_exp_f32 v85, v85")
        if e == 3: A("v_mul_f32 v86, v82, v85")
        if e == 5: A("v_add_f32_dpp v87, v86, v86 quad_perm:[1,0,3,2] row_mask:0xf bank_mask:0xf")
        if e == 7: A("v_add_f32_dpp v87, v87, v87 quad_perm:[2,3,0,1] row_mask:0xf bank_mask:0xf")
    for e in range(8):
        d = f"v[{96+4*e}:{99+4*e}]"
        A(f"v_mfma_f32_16x16x32_bf16 {d}, v[72:75], v[{224+4*e}:{227+4*e}], {d}")
        if e == 0: A("v_rcp_f32 v87, v87")
        if e == 1: A("v_mul_f32 v85, v85, v87")
        if e >= 4: A(f"v_mov_b32_dpp v{88+e-4}, v85 quad_perm:[{e-4},{e-4},{e-4},{e-4}] row_mask:0xf bank_mask:0xf")
    A("s_nop 3")
    for r in range(4):
        for e in range(8):
            A(f"v_mul_f32 v{48+e}, v{96+4*e}, v88" if r == 0 else f"v_fmac_f32 v{48+e}, v{96+4*e+r}, v{88+r}")
    A("s_mov_b64 exec, 0x01ff01ff")
    A(f"ds_write_b128 v6, v[48:51] offset:{L_Y}\nds_write_b128 v6, v[52:55] offset:{L_Y+16}")
    A("s_mov_b64 exec, -1")
    A("s_waitcnt lgkmcnt(0)\ns_barrier")
    for wv in range(4): A(f"ds_read_b32 v{48+wv}, v7 offset:{L_Y+wv*576}")
    A("v_mov_b32 v53, s23\ns_mov_b32 s72, -1\ns_mov_b32 s73, 15")
    A("s_waitcnt lgkmcnt(0)")
    A("v_add_f32 v48, v48, v49\nv_add_f32 v50, v50, v51\nv_add_f32 v52, v48, v50")
    A("s_mov_b64 exec, s[72:73]")
    A.vm("buffer_store_dwordx2 v[52:53], v8, s[40:43], s58 offen sc1")
    A("s_mov_b64 exec, -1")
    stamp(8)
    A("s_cmp_eq_u32 s20, 3\ns_cbranch_scc1 L_fin")
    A("s_cmp_eq_u32 s20, 2\ns_cselect_b32 s72, 0xffff, -1\ns_cselect_b32 s73, 0, -1\ns_mov_b64 exec, s[72:73]")
    lc, lo = A.label("g2chk"), A.label("g2ok")
    A(f"s_mov_b32 s79, {SPIN}")
    A(f"{lc}:\nbuffer_load_dwordx2 v[56:57], v29, s[40:43], s59 offen sc1\ns_waitcnt vmcnt(0)")
    A(f"v_cmp_ne_u32 vcc, s23, v57\ns_cbranch_vccz {lo}\n" + ("s_sleep 4\n" if back else "") + f"s_sub_u32 s79, s79, 1\ns_cbranch_scc0 {lc}\n{lo}:")
    for sh in (8, 4, 2, 1):
        A(f"s_nop 1\nv_add_f32_dpp v56, v56, v56 row_ror:{sh} row_mask:0xf bank_mask:0xf")
    A("v_cmp_eq_u32 vcc, 0, v1\nv_cvt_pk_bf16_f32 v56, v56, v56\ns_and_b64 exec, exec, vcc")
    A("buffer_store_short v56, v28, s[44:47], 0 offen")
    A("s_or_b32 s70, s6, s4\ns_or_b32 s70, s70, s20\ns_cmp_lg_u32 s70, 0\ns_cbranch_scc1 L_fin")
    A(f"s_mov_b64 exec, 1\ns_lshl_b32 s70, s5, 8\ns_add_u32 s70, s70, {WS_E}\nv_mov_b32 v9, 0")
    A("buffer_store_dword v53, v9, s[40:43], s70 offen")
    A("L_fin:")
    if stamps:
        stamp(9)
        A("s_mov_b64 exec, 1\ns_lshl_b32 s70, s2, 2\ns_add_u32 s70, s70, s20\ns_mul_i32 s70, s70, 80\ns_add_u32 s70, s70, 0x10000000")
        A("s_add_u32 s64, s64, s70\ns_addc_u32 s65, s65, 0\nv_mov_b32 v9, 0")
        for i in range(20): A(f"v_mov_b32 v{64+i}, s{80+i}")
        for i in range(5): A(f"global_store_dwordx4 v9, v[{64+4*i}:{67+4*i}], s[64:65] offset:{16*i}")
    A("L_end:\ns_endpgm")
    A(f""".section .rodata,"a"
.p2align 6
.amdhsa_kernel {NAME}
  .amdhsa_next_free_vgpr 512
  .amdhsa_next_free_sgpr 102
  .amdhsa_accum_offset 256
  .amdhsa_group_segment_fixed_size 0
  .amdhsa_kernarg_size 104
  .amdhsa_user_sgpr_count 2
  .amdhsa_user_sgpr_kernarg_segment_ptr 1
  .amdhsa_system_sgpr_workgroup_id_x 1
.end_amdhsa_kernel""")
    return "\n".join(A.L) + "\n"
if __name__ == "__main__":
    for spec in sys.argv[1:]:
        name, _, args = spec.partition(":")
        kw = eval(f"dict({args})")
        open(name + ".s", "w").write(gen(**kw))
```
